```python
import torch

def _softmax(x, axis=-1):
    return torch.softmax(x, dim=axis)
def _gelu(x):
    return torch.nn.functional.gelu(x, approximate="tanh")
def _silu(x):
    return torch.nn.functional.silu(x)
def _sigmoid(x):
    return torch.sigmoid(x)
def _layernorm(x, axis=-1, eps=1e-5):
    m = x.mean(dim=axis, keepdim=True)
    v = x.var(dim=axis, keepdim=True, unbiased=False)
    return (x - m) / torch.sqrt(v + eps)
def _scatter_add(tgt, idx, src, axis=0):
    return tgt.clone().index_add_(axis, idx, src)
def _segment_sum(src, seg, n):
    out = torch.zeros((n,) + src.shape[1:], dtype=src.dtype)
    return out.index_add_(0, seg, src)
def _pad(x, pw):
    flat = tuple(v for pair in reversed(pw) for v in pair)
    return torch.nn.functional.pad(x, flat)

kernel_name = 'concat_heads__gqa_block_cached__sliding_block_cached__decode'

def setup_inputs():

    _w = (lambda a: (lambda t: t.to(torch.bfloat16) if t.is_floating_point() else t)(torch.as_tensor(a)))
    def _A_setup():
        B, Sq, D = 2, 1, 512
        Hq, Hkv, Sk, Dh = 32, 8, 32768, 128
        assert Hq % Hkv == 0, (Hq, Hkv)
        return {
            "x": _w((lambda *s: torch.randn(*s, dtype=torch.bfloat16) * 1.6)(B, Sq, D)),
            "k_cache": _w((lambda *s: torch.randn(*s, dtype=torch.bfloat16) * 1.6)(B, Hkv, Sk, Dh)),
            "v_cache": _w((lambda *s: torch.randn(*s, dtype=torch.bfloat16) * 0.05)(B, Hkv, Sk, Dh)),
            "wq": _w((lambda *s: torch.randn(*s, dtype=torch.bfloat16) * 1.6)(D, Hq * Dh) * (D ** -0.5)),
            "wo": _w((lambda *s: torch.randn(*s, dtype=torch.bfloat16) * 0.05)(Hq * Dh, D) * ((Hq * Dh) ** -0.5)),
        }
    _A_in = _A_setup()

    def _B_setup():
        B, Sq, D = 2, 1, 512
        Hq, Hkv, Sk, Dh = 32, 8, 32768, 128
        assert Hq % Hkv == 0, (Hq, Hkv)
        return {
            "x": _w((lambda *s: torch.randn(*s, dtype=torch.bfloat16) * 1.6)(B, Sq, D)),
            "k_cache": _w((lambda *s: torch.randn(*s, dtype=torch.bfloat16) * 1.6)(B, Hkv, Sk, Dh)),
            "v_cache": _w((lambda *s: torch.randn(*s, dtype=torch.bfloat16) * 0.05)(B, Hkv, Sk, Dh)),
            "wq": _w((lambda *s: torch.randn(*s, dtype=torch.bfloat16) * 1.6)(D, Hq * Dh) * (D ** -0.5)),
            "wo": _w((lambda *s: torch.randn(*s, dtype=torch.bfloat16) * 0.05)(Hq * Dh, D) * ((Hq * Dh) ** -0.5)),
        }
    _B_in = _B_setup()

    return {
        "A_x": _A_in["x"],
        "A_k_cache": _A_in["k_cache"],
        "A_v_cache": _A_in["v_cache"],
        "A_wq": _A_in["wq"],
        "A_wo": _A_in["wo"],
        "B_x": _B_in["x"],
        "B_k_cache": _B_in["k_cache"],
        "B_v_cache": _B_in["v_cache"],
        "B_wq": _B_in["wq"],
        "B_wo": _B_in["wo"],
    }

def reference(A_x, A_k_cache, A_v_cache, A_wq, A_wo, B_x, B_k_cache, B_v_cache, B_wq, B_wo):
    def _A_ref(x, k_cache, v_cache, wq, wo):
        B, Sq, D = x.shape
        Hq, Dh = 32, 128
        Hkv = k_cache.shape[1]
        rep = Hq // Hkv
        q = (lambda x, *d: x.permute(*d))((x @ wq).reshape(B, Sq, Hq, Dh), 0, 2, 1, 3)
        k = (lambda x, n, axis: torch.repeat_interleave(x, n, dim=axis))(k_cache, rep, axis=1)
        v = (lambda x, n, axis: torch.repeat_interleave(x, n, dim=axis))(v_cache, rep, axis=1)
        scores = torch.einsum("bhqd,bhkd->bhqk", q, k) * (Dh ** -0.5)
        p = _softmax(scores, axis=-1)
        o = torch.einsum("bhqk,bhkd->bhqd", p, v)
        return (lambda x, *d: x.permute(*d))(o, 0, 2, 1, 3).reshape(B, Sq, Hq * Dh) @ wo

    def _B_ref(x, k_cache, v_cache, wq, wo):
        B, Sq, D = x.shape
        Hq, Dh = 32, 128
        Hkv, Sk = k_cache.shape[1], k_cache.shape[2]
        W = min(4096, max(256, Sk // 4))
        rep = Hq // Hkv
        q = (lambda x, *d: x.permute(*d))((x @ wq).reshape(B, Sq, Hq, Dh), 0, 2, 1, 3)
        k = (lambda x, n, axis: torch.repeat_interleave(x, n, dim=axis))(k_cache[:, :, Sk - W:, :], rep, axis=1)
        v = (lambda x, n, axis: torch.repeat_interleave(x, n, dim=axis))(v_cache[:, :, Sk - W:, :], rep, axis=1)
        scores = torch.einsum("bhqd,bhkd->bhqk", q, k) * (Dh ** -0.5)
        p = _softmax(scores, axis=-1)
        o = torch.einsum("bhqk,bhkd->bhqd", p, v)
        return (lambda x, *d: x.permute(*d))(o, 0, 2, 1, 3).reshape(B, Sq, Hq * Dh) @ wo

    a = _A_ref(A_x, A_k_cache, A_v_cache, A_wq, A_wo)
    b = _B_ref(B_x, B_k_cache, B_v_cache, B_wq, B_wo)
    return torch.concatenate([a, b], axis=-1)
```

```python
import re

TRANS = ("v_exp_f32", "v_log_f32", "v_rcp_f32", "v_rsq_f32", "v_sqrt_f32", "v_sin_f32", "v_cos_f32", "v_rcp_iflag_f32")

def split_ops(s):
    out, depth, cur = [], 0, ""
    for ch in s:
        if ch == "[": depth += 1
        if ch == "]": depth -= 1
        if ch == "," and depth == 0:
            out.append(cur.strip()); cur = ""
        else:
            cur += ch
    if cur.strip(): out.append(cur.strip())
    return out

REG1 = re.compile(r"^-?(?:abs\()?\|?([vas])(\d+)\|?\)?$")
REGN = re.compile(r"^-?\|?([vas])\[(\d+):(\d+)\]\|?$")
def regs(op):
    op = op.strip()
    m = REG1.match(op)
    if m: return {(m.group(1), int(m.group(2)))}
    m = REGN.match(op)
    if m: return {(m.group(1), i) for i in range(int(m.group(2)), int(m.group(3)) + 1)}
    if op in ("vcc", "vcc_lo", "vcc_hi"): return {("x", "vcc")}
    if op in ("exec", "exec_lo", "exec_hi"): return {("x", "exec")}
    if op == "m0": return {("x", "m0")}
    return set()

class Ins:
    def __init__(self, text):
        self.text = text
        t = text.split(";")[0].strip()
        self.label = None
        self.mn = ""
        self.kind = "other"
        self.dst, self.src = set(), set()
        self.srcC = set(); self.srcAB = set()
        self.dpp = False; self.trans = False; self.nws = 1
        self.target = None; self.cond = False
        self.lds_dma = False; self.wide_store = set()
        if not t or t.startswith("."):
            self.kind = "dir"; self.nws = 0; return
        if t.endswith(":"):
            self.label = t[:-1]; self.kind = "label"; self.nws = 0; return
        p = t.split(None, 1)
        mn = p[0]; self.mn = mn
        rest = p[1] if len(p) > 1 else ""
        ops = split_ops(rest)
        mods = ""
        if ops:
            last = ops[-1]
            toks = last.split()
            ops[-1] = toks[0]
            mods = " ".join(toks[1:])
        self.ops, self.mods = ops, mods
        R = [regs(o) for o in ops]
        if mn == "s_nop":
            self.kind = "nop"; self.nws = int(ops[0], 0) + 1
        elif mn in ("s_branch",) or mn.startswith("s_cbranch"):
            self.kind = "branch"; self.target = ops[0]; self.cond = mn != "s_branch"
        elif mn == "s_endpgm":
            self.kind = "end"
        elif mn.startswith("v_mfma"):
            self.kind = "mfma"; self.dst = R[0]; self.srcAB = R[1] | R[2]; self.srcC = R[3]; self.src = self.srcAB | self.srcC
            self.passes = 8 if "32x32" in mn else 4
        elif mn.startswith("v_"):
            self.kind = "valu"
            base = mn.replace("_e32", "").replace("_e64", "").replace("_dpp", "")
            self.trans = base in TRANS
            self.dpp = ("row_" in mods) or ("quad_perm" in mods) or ("row_" in rest) or ("quad_perm" in rest)
            if "permlane" in mn:
                self.dst = R[0] | R[1]; self.src = R[0] | R[1]; self.kind = "permlane"
            else:
                self.dst = R[0]
                self.src = set().union(*R[1:]) if len(R) > 1 else set()
                if base in ("v_fmac_f32", "v_dot2c_f32_bf16", "v_writelane_b32") or self.dpp: self.src |= R[0]
                if base.startswith("v_cndmask") and len(ops) == 3: self.src |= {("x", "vcc")}
                if base in ("v_readfirstlane_b32", "v_readlane_b32"): self.kind = "readlane"
        elif mn.startswith("buffer_") or mn.startswith("global_"):
            self.kind = "vmem"
            allmods = mods
            if mn.startswith("buffer_load"):
                if " lds" in " " + allmods:
                    self.lds_dma = True; self.src = set().union(*R) | {("x", "m0")}
                else:
                    self.dst = R[0]; self.src = set().union(*R[1:])
            elif mn.startswith("buffer_store"):
                self.src = set().union(*R)
                if "x3" in mn or "x4" in mn: self.wide_store = R[0]
            elif mn.startswith("buffer_atomic"):
                self.src = set().union(*R)
                if "sc0" in allmods: self.dst = R[0]
            elif mn in ("buffer_wbl2", "buffer_inv"):
                pass
            else:
                raise ValueError("unhandled vmem " + text)
        elif mn.startswith("ds_"):
            self.kind = "ds"
            if mn.startswith("ds_read") or mn.startswith("ds_bpermute") or mn.startswith("ds_swizzle"):
                self.dst = R[0]; self.src = set().union(*R[1:])
            else:
                self.src = set().union(*R)
        elif mn.startswith("s_"):
            self.kind = "salu"
            if mn.startswith("s_cmp") or mn.startswith("s_waitcnt") or mn in ("s_barrier", "s_sleep", "s_setprio") or mn.startswith("s_bitcmp"):
                self.src = set().union(*R) if R else set()
            else:
                self.dst = R[0] if R else set()
                self.src = set().union(*R[1:]) if len(R) > 1 else set()
                if "saveexec" in mn: self.dst |= {("x", "exec")}
        else:
            raise ValueError("unknown instruction " + text)

def isv(r): return r[0] in ("v", "a")
def iss(r): return r[0] == "s" or r == ("x", "vcc")

MAXAGE = 24
def need(ins, st):
    n = 0
    def req(key, ws):
        nonlocal n
        if key in st and st[key] < ws: n = max(n, ws - st[key])
    k = ins.kind
    if k == "mfma":
        for r in ins.src:
            req(("valuw", r), 2)
        for r in ins.srcAB:
            req(("mfmaw4", r), 8); req(("mfmaw8", r), 12)
        for r in ins.srcC:
            for tagk, ws in (("mfmaw4", 6), ("mfmaw8", 10)):
                if (tagk, r) in st and st.get(("mfmaD", r), (None,))[0:1] != (None,):
                    pass
            d = st.get(("mfmaDset", r))
        req(("execw_valu", "exec"), 4)
    if k in ("valu", "permlane", "readlane"):
        for r in ins.src | ins.dst:
            if isv(r):
                req(("mfmaw4", r), 8); req(("mfmaw8", r), 12)
        for r in ins.dst:
            if isv(r):
                req(("mfmaC4", r), 3); req(("mfmaC8", r), 7); req(("wstore", r), 2)
        for r in ins.src:
            if isv(r) and not ins.trans: req(("transw", r), 1)
            if iss(r): req(("valusw", r), 2)
        if ins.dpp:
            for r in ins.src:
                if isv(r): req(("valuw", r), 2)
            req(("execw_valu", "exec"), 5)
        if k == "permlane":
            for r in ins.src: req(("valuw", r), 2)
        if k == "readlane":
            for r in ins.src:
                if isv(r): req(("valuw", r), 1)
                if iss(r): req(("valusw", r), 4)
    if k in ("vmem", "ds"):
        for r in ins.src | ins.dst:
            if isv(r):
                req(("mfmaw4", r), 8); req(("mfmaw8", r), 12)
        for r in ins.src:
            if iss(r): req(("valusw", r), 5)
        if ins.lds_dma: req(("m0w", "m0"), 1)
        for r in ins.dst:
            if isv(r): req(("wstore", r), 1)
    if k in ("salu", "branch"):
        for r in ins.src:
            if iss(r): req(("valusw", r), 1)
        if k == "branch" and ins.mn in ("s_cbranch_vccz", "s_cbranch_vccnz"):
            req(("valusw", ("x", "vcc")), 1)
    return n

def mfma_c_need(ins, st):
    n = 0
    if ins.kind != "mfma": return 0
    for r in ins.srcC:
        for tagk, ws in (("mfmaw4", 6), ("mfmaw8", 10)):
            if (tagk, r) in st and st[(tagk, r)] < ws:
                same = st.get(("mfmaDtuple", r))
                if isinstance(same, tuple) and same[1] == frozenset(ins.srcC) and same[2] == ins.passes:
                    continue
                n = max(n, ws - st[(tagk, r)])
    return n

def step(ins, st):
    w = ins.nws
    ns = {}
    for key, age in st.items():
        if isinstance(age, tuple):
            a = age[0] + w
            if a <= MAXAGE: ns[key] = (a,) + age[1:]
        else:
            a = age + w
            if a <= MAXAGE: ns[key] = a
    k = ins.kind
    if k == "mfma":
        tag = "mfmaw4" if ins.passes == 4 else "mfmaw8"
        for r in ins.dst:
            ns[(tag, r)] = 0
            ns[("mfmaDtuple", r)] = (0, frozenset(ins.dst), ins.passes)
            ns.pop(("valuw", r), None)
        for r in ins.srcC:
            ns[("mfmaC4" if ins.passes == 4 else "mfmaC8", r)] = 0
    elif k in ("valu", "permlane", "readlane"):
        for r in ins.dst:
            if isv(r):
                ns[("valuw", r)] = 0
                if ins.trans: ns[("transw", r)] = 0
                else: ns.pop(("transw", r), None)
                ns.pop(("mfmaw4", r), None); ns.pop(("mfmaw8", r), None); ns.pop(("mfmaDtuple", r), None)
            elif iss(r):
                ns[("valusw", r)] = 0
            elif r == ("x", "exec"):
                ns[("execw_valu", "exec")] = 0
    elif k == "salu":
        for r in ins.dst:
            if r == ("x", "m0"): ns[("m0w", "m0")] = 0
            if iss(r): ns.pop(("valusw", r), None)
    elif k == "vmem":
        for r in ins.wide_store: ns[("wstore", r)] = 0
    return ns

def merge(a, b):
    if a is None: return dict(b)
    out = dict(a)
    for key, age in b.items():
        if key not in out: out[key] = age
        else:
            x = out[key]
            if isinstance(age, tuple):
                if x[1:] != age[1:]:
                    out[key] = (min(x[0], age[0]), frozenset(), -1)
                else:
                    out[key] = (min(x[0], age[0]),) + age[1:]
            else:
                out[key] = min(x, age)
    return out

def fix_hazards(lines, verbose=False):
    ins = [Ins(l) for l in lines]
    total = 0
    for _pass in range(6):
        label_state = {}
        changed_any = False
        for it in range(4):
            st = {}
            reachable = True
            new_label_in = {}
            inserts = {}
            for i, x in enumerate(ins):
                if x.kind == "label":
                    ls = label_state.get(x.label)
                    if reachable: st = merge(ls, st) if ls is not None else st
                    else: st = dict(ls) if ls is not None else {}
                    reachable = True
                    continue
                if x.kind == "dir": continue
                n = max(need(x, st), mfma_c_need(x, st))
                if n > 0:
                    inserts[i] = n
                    st = step(Ins(f"s_nop {n-1}"), st)
                st = step(x, st)
                if x.kind == "branch":
                    new_label_in[x.target] = merge(new_label_in.get(x.target), st)
                    if not x.cond: reachable = False; st = {}
                if x.kind == "end": reachable = False; st = {}
            if new_label_in == label_state: break
            label_state = new_label_in
        if not inserts: break
        out = []
        for i, x in enumerate(ins):
            if i in inserts:
                n = inserts[i]; total += 1
                while n > 0:
                    m = min(n, 16); out.append(Ins(f"s_nop {m-1}")); n -= m
                if verbose: print("nop", inserts[i], "before", x.text)
            out.append(x)
        ins = out
    return [x.text for x in ins]
```

```python
import sys, math, struct
from asmlib import fix_hazards
KN = "concat_heads__gqa_block_cached__sliding_block_cached__decode_kernel"

QBOX, BOXML, BOXO, BOX2 = 0x10000, 0x20000, 0x100000, 0x200000
STAMP = 0x800000
LDS_WQ, LDS_QP, LDS_QL, LDS_ST, LDS_RED = 0, 0x8000, 0x8400, 0x9000, 0xD200
LDS_SIZE = 0xD800
CSC = struct.unpack("<I", struct.pack("<f", (128 ** -0.5) * math.log2(math.e)))[0]

def gen(D=8, wqfl="nt", wofl="nt", kvfl="nt", stamps=False, spin=1 << 16):
    L = []
    I = L.append
    nst = [0]
    def stamp():
        if not stamps: return
        k = nst[0]; nst[0] += 1
        I("s_memrealtime s[76:77]"); I("s_waitcnt lgkmcnt(0)"); I(f"s_mov_b32 s{80+k}, s76")
    wssize = 0x1000000 if stamps else 0x300000
    I(f"; @launch grid=(256,1,1) block=(256,1,1) lds={LDS_SIZE}")
    I('.amdgcn_target "amdgcn-amd-amdhsa--gfx950"')
    I(".text"); I(f".globl {KN}"); I(".p2align 8"); I(f".type {KN},@function"); I(f"{KN}:")
    I("s_cmp_ge_u32 s2, 256"); I("s_cbranch_scc1 L_end")
    I("s_load_dwordx16 s[4:19], s[0:1], 0")
    I("s_load_dwordx8 s[20:27], s[0:1], 64")
    I("s_load_dwordx2 s[28:29], s[0:1], 96")
    if stamps:
        I("s_memrealtime s[76:77]")
    I("v_lshrrev_b32 v4, 6, v0")
    I("v_and_b32 v1, 63, v0")
    I("v_readfirstlane_b32 s3, v4")
    I("v_lshrrev_b32 v4, 4, v1")
    I("v_and_b32 v5, 15, v1")
    I("v_lshlrev_b32 v2, 8, v5"); I("v_lshl_add_u32 v2, v4, 4, v2")
    I("v_lshlrev_b32 v3, 4, v5"); I("v_lshl_add_u32 v3, v4, 10, v3")
    I("v_lshrrev_b32 v6, 2, v1"); I("v_lshlrev_b32 v6, 13, v6")
    I("v_and_b32 v7, 3, v1"); I("v_lshl_add_u32 v6, v7, 4, v6")
    I("v_and_b32 v7, 1, v1"); I("v_lshlrev_b32 v7, 10, v7"); I("v_lshl_add_u32 v7, v4, 4, v7")
    I("s_and_b32 s63, s2, 15")
    I("s_lshr_b32 s56, s63, 3")
    I("s_and_b32 s57, s63, 7")
    I("s_lshr_b32 s58, s2, 4")
    I("s_lshl_b32 s68, s63, 23")
    I("s_lshl_b32 s69, s58, 19"); I("s_add_u32 s69, s69, s68")
    I("s_lshl_b32 s72, s58, 16"); I("s_add_u32 s72, s72, s68"); I(f"s_add_u32 s72, s72, {7<<20}")
    I("s_lshl_b32 s62, s3, 20"); I("s_lshl_b32 s73, s57, 10"); I("s_add_u32 s62, s62, s73"); I("s_lshl_b32 s73, s58, 6"); I("s_add_u32 s62, s62, s73")
    I("s_lshl_b32 s75, s3, 13")
    I("s_lshl_b32 s73, s3, 8")
    I("s_lshl_b32 s60, s3, 12")
    I("s_waitcnt lgkmcnt(0)")
    if stamps: I("s_mov_b32 s80, s76"); nst[0] = 1
    I("s_cmp_eq_u32 s56, 0")
    I("s_cselect_b32 s48, s4, s14"); I("s_cselect_b32 s49, s5, s15")
    I("s_cselect_b32 s44, s10, s20"); I("s_cselect_b32 s45, s11, s21")
    I("s_cselect_b32 s30, s12, s22"); I("s_cselect_b32 s31, s13, s23")
    I("s_mov_b32 s46, 0x400000"); I("s_mov_b32 s47, 0x20000")
    I("s_mov_b32 s50, 0x800"); I("s_mov_b32 s51, 0x20000")
    for i in range(8):
        I(f"s_add_u32 m0, s75, {i*1024}")
        if i: I("s_add_u32 s62, s62, 0x20000")
        else: I("s_nop 0")
        I(f"buffer_load_dwordx4 v6, s[44:47], s62 offen {wqfl} lds")
    for st in range(4):
        I(f"buffer_load_dwordx4 v[{128+4*st}:{131+4*st}], v7, s[48:51], s73 offen offset:{st*64}")
    I("s_mov_b32 s40, s28"); I("s_mov_b32 s41, s29"); I(f"s_mov_b32 s42, {wssize}"); I("s_mov_b32 s43, 0x20000")
    I("buffer_load_dword v8, off, s[40:43], 0 sc1")
    I("s_add_u32 s32, s16, s72"); I("s_addc_u32 s33, s17, 0"); I("s_mov_b32 s34, 0x10000"); I("s_mov_b32 s35, 0x20000")
    I("s_add_u32 s36, s18, s72"); I("s_addc_u32 s37, s19, 0"); I("s_mov_b32 s38, 0x10000"); I("s_mov_b32 s39, 0x20000")
    I("s_add_u32 s52, s6, s69"); I("s_addc_u32 s53, s7, 0")
    I("s_add_u32 s54, s8, s69"); I("s_addc_u32 s55, s9, 0")
    I("v_mov_b32 v12, -1"); I("v_mov_b32 v13, -1"); I("v_mov_b32 v14, -1"); I("v_mov_b32 v15, -1")
    I("v_lshlrev_b32 v16, 4, v0")
    I("v_lshlrev_b32 v17, 2, v1")
    I("s_lshl_b32 s68, s2, 12")
    I(f"s_add_u32 s62, s68, {BOXO}"); I("buffer_store_dwordx4 v[12:15], v16, s[40:43], s62 offen sc1")
    I(f"s_add_u32 s62, s68, {BOX2}"); I("buffer_store_dwordx4 v[12:15], v16, s[40:43], s62 offen sc1")
    I("s_lshl_b32 s62, s2, 8"); I(f"s_add_u32 s62, s62, {BOXML}"); I("buffer_store_dword v12, v17, s[40:43], s62 offen sc1")

    def loadK(e, kb, soff, pace):
        for j in range(4):
            r = 32*e + 16*kb + 4*j
            if pace: I(f"s_waitcnt vmcnt({D-1})")
            I(f"buffer_load_dwordx4 a[{r}:{r+3}], v2, s[32:35], {soff} offen offset:{j*64} {kvfl}")
    def loadV(e, kb, soff, pace):
        for jj in range(4):
            r = 64 + 32*e + 16*kb + 4*jj
            if pace: I(f"s_waitcnt vmcnt({D-1})")
            I(f"buffer_load_dwordx4 v[{r}:{r+3}], v3, s[36:39], {soff} offen offset:{jj*256} {kvfl}")
    loadK(0, 0, "s60", False); loadV(0, 0, "s60", False)
    I(f"s_mov_b32 s65, {CSC:#x}"); I("s_mov_b32 s66, 0x05040100"); I("s_mov_b32 s67, 0x07060302")
    I("s_mov_b32 s70, 0x000f000f"); I("s_mov_b32 s71, 0x000f000f")
    I("v_lshrrev_b32 v9, 2, v5"); I("v_lshlrev_b32 v9, 6, v9"); I("v_and_b32 v10, 3, v5"); I("v_lshl_add_u32 v9, v10, 3, v9")
    I("v_lshl_add_u32 v9, v4, 9, v9"); I("v_add_u32 v9, s75, v9")
    I("s_waitcnt vmcnt(8)")
    stamp()
    I("v_readfirstlane_b32 s64, v8")
    for st in range(4):
        for cb in range(2):
            for hh in range(2):
                r = 96 + st*8 + cb*4 + hh*2
                I(f"ds_read_b64_tr_b16 v[{r}:{r+1}], v9 offset:{st*2048 + hh*256 + cb*32}")
    I("s_mul_i32 s64, s64, 0x9E3779B1"); I("s_add_u32 s64, s64, 0x7F4A7C15")
    for st in range(4):
        I(f"s_waitcnt lgkmcnt({12 - 4*st})")
        for cb in range(2):
            r = 96 + st*8 + cb*4
            c = "0" if st == 0 else f"v[{160+4*cb}:{163+4*cb}]"
            I(f"v_mfma_f32_16x16x32_bf16 v[{160+4*cb}:{163+4*cb}], v[{128+4*st}:{131+4*st}], v[{r}:{r+3}], {c}")
    I(f"s_lshl_b32 s62, s3, 8"); I(f"s_add_u32 s62, s62, {LDS_QP}")
    I("v_add_u32 v10, s62, v17")
    I("s_mov_b64 exec, 0xffff")
    for cb in range(2):
        for b in range(2):
            I(f"ds_write_b32 v10, v{160+4*cb+b} offset:{b*128 + cb*64}")
    I("s_mov_b64 exec, -1")
    I("s_waitcnt lgkmcnt(0)"); I("s_barrier")
    I("s_cmp_eq_u32 s3, 0"); I("s_cbranch_scc0 L_nopub")
    I("v_lshrrev_b32 v10, 4, v1"); I("v_lshlrev_b32 v10, 7, v10"); I("v_lshl_add_u32 v10, v5, 3, v10")
    I("s_mov_b32 exec_lo, -1"); I("s_mov_b32 exec_hi, 0")
    for w in range(4):
        I(f"ds_read_b64 v[{18+2*w}:{19+2*w}], v10 offset:{LDS_QP + w*256}")
    I("v_lshlrev_b32 v11, 11, v4"); I("v_lshl_add_u32 v11, v5, 3, v11")
    I("s_lshl_b32 s62, s63, 12"); I("s_lshl_b32 s68, s58, 7"); I("s_add_u32 s62, s62, s68"); I(f"s_add_u32 s62, s62, {QBOX}")
    I("s_waitcnt lgkmcnt(0)")
    I("v_add_f32 v18, v18, v20"); I("v_add_f32 v19, v19, v21"); I("v_add_f32 v22, v22, v24"); I("v_add_f32 v23, v23, v25")
    I("v_add_f32 v18, v18, v22"); I("v_add_f32 v19, v19, v23")
    I("v_cvt_pk_bf16_f32 v18, v18, v19"); I("v_mov_b32 v19, s64")
    I("buffer_store_dwordx2 v[18:19], v11, s[40:43], s62 offen sc1")
    I("s_mov_b64 exec, -1")
    I("L_nopub:")
    stamp()
    I("s_add_u32 s62, s60, 0x4000")
    loadK(0, 1, "s62", True); loadV(0, 1, "s62", True)
    I("v_lshlrev_b32 v10, 3, v0")
    I("v_and_b32 v11, 15, v0"); I("v_lshlrev_b32 v11, 12, v11"); I("v_lshrrev_b32 v18, 4, v0"); I("v_lshl_add_u32 v11, v18, 7, v11")
    I("s_lshl_b32 s68, s57, 12"); I("s_lshl_b32 s69, s56, 11"); I("s_add_u32 s68, s68, s69"); I(f"s_add_u32 s68, s68, {QBOX}")
    I(f"s_add_u32 s69, s68, 0x8000")
    I(f"s_mov_b32 s72, {QBOX + 4}")
    def polls():
        I("buffer_load_dwordx2 v[20:21], v10, s[40:43], s68 offen sc1")
        I("buffer_load_dwordx2 v[22:23], v10, s[40:43], s69 offen sc1")
        I("buffer_load_dword v24, v11, s[40:43], s72 offen sc1")
    polls()
    I("s_add_u32 s62, s60, 0x8000")
    loadK(1, 0, "s62", True)
    I(f"s_mov_b32 s74, {spin}")
    I("s_waitcnt vmcnt(4)")
    I("L_qchk:")
    I("v_cmp_ne_u32 vcc, s64, v21"); I("v_cmp_ne_u32 s[78:79], s64, v23"); I("s_or_b64 vcc, vcc, s[78:79]")
    I("v_cmp_ne_u32 s[78:79], s64, v24"); I("s_or_b64 vcc, vcc, s[78:79]")
    I("s_cbranch_vccz L_qok")
    I("s_sub_u32 s74, s74, 1"); I("s_cbranch_scc1 L_qok")
    polls()
    I("s_waitcnt vmcnt(0)")
    I("s_branch L_qchk")
    I("L_qok:")
    stamp()
    I("v_lshlrev_b32 v10, 2, v0")
    I(f"ds_write_b32 v10, v20 offset:{LDS_QL}"); I(f"ds_write_b32 v10, v22 offset:{LDS_QL + 1024}")
    I("v_and_b32 v11, 3, v5"); I("v_lshlrev_b32 v11, 8, v11"); I("v_lshl_add_u32 v190, v4, 4, v11")
    I("s_waitcnt lgkmcnt(0)"); I("s_barrier")
    for j in range(4):
        I(f"ds_read_b128 a[{64+4*j}:{67+4*j}], v190 offset:{LDS_QL + 1024 + j*64}")
    I("s_add_u32 s62, s60, 0xc000")
    loadK(1, 1, "s62", True)
    I("s_mov_b32 s32, s52"); I("s_mov_b32 s33, s53"); I("s_mov_b32 s34, 0x80000")
    I("s_add_u32 s61, s60, 0x8000")
    for r in range(32, 64): I(f"v_mov_b32 v{r}, 0")
    I("v_mov_b32 v184, 0xff800000"); I("v_mov_b32 v185, 0")
    I("s_mul_i32 s62, s3, 2112"); I(f"s_add_u32 s62, s62, {LDS_ST + 8448}")
    I("v_mul_u32_u24 v191, 528, v5"); I("v_add_u32 v191, s62, v191")
    I("v_lshl_add_u32 v189, v4, 7, v191")
    I("s_mov_b32 s59, 0")
    I("s_waitcnt lgkmcnt(0)")
    stamp()
    I("L_loop:")
    for e in range(2):
        Kb = 32*e; Vc = 64 + 32*e; ne = 1 - e
        def qk(kb):
            for j in range(4):
                c = "0" if j == 0 else f"v[{160+4*kb}:{163+4*kb}]"
                I(f"v_mfma_f32_16x16x32_bf16 v[{160+4*kb}:{163+4*kb}], a[{Kb+16*kb+4*j}:{Kb+16*kb+4*j+3}], a[{64+4*j}:{67+4*j}], {c}")
        for kb in range(2):
            qk(kb)
            I("s_cmp_eq_u32 s59, 8"); I(f"s_cbranch_scc1 L_skipK{e}{kb}")
            if kb == 0: loadK(e, 0, "s60", True)
            else:
                I("s_add_u32 s62, s60, 0x4000"); loadK(e, 1, "s62", True); I("s_add_u32 s60, s60, 0x8000")
            I(f"L_skipK{e}{kb}:")
            if e == 1:
                I("s_cmp_eq_u32 s59, 8"); I(f"s_cbranch_scc1 L_skipV{e}{kb}")
            if kb == 0: loadV(ne, 0, "s61", True)
            else:
                I("s_add_u32 s62, s61, 0x4000"); loadV(ne, 1, "s62", True); I("s_add_u32 s61, s61, 0x8000")
            if e == 1: I(f"L_skipV{e}{kb}:")
        if e == 0:
            I("s_cmp_eq_u32 s59, 0"); I("s_cbranch_scc0 L_noVsw")
            I("s_mov_b32 s36, s54"); I("s_mov_b32 s37, s55"); I("s_mov_b32 s38, 0x80000"); I("s_lshl_b32 s61, s3, 12")
            I("L_noVsw:")
            I("s_cmp_eq_u32 s59, 8"); I("s_cbranch_scc0 L_nowo")
            I("s_mov_b32 s44, s30"); I("s_mov_b32 s45, s31")
            I("s_lshl_b32 s62, s57, 19"); I("s_lshl_b32 s68, s58, 15"); I("s_add_u32 s62, s62, s68"); I("s_lshl_b32 s68, s3, 8"); I("s_add_u32 s62, s62, s68")
            I("v_lshlrev_b32 v4, 4, v5"); I("v_lshrrev_b32 v6, 4, v1"); I("v_lshl_add_u32 v4, v6, 11, v4")
            for jj in range(8):
                if jj % 4 == 0: I("s_mov_b32 s68, s62")
                else: I("s_add_u32 s68, s68, 0x2000")
                I(f"buffer_load_dwordx4 v[{128+4*jj}:{131+4*jj}], v4, s[44:47], s68 offen offset:{(jj//4)*1024} {wofl}")
            I("L_nowo:")
        I("v_max3_f32 v187, v160, v161, v162"); I("v_max3_f32 v187, v187, v163, v164")
        I("v_max3_f32 v187, v187, v165, v166"); I("v_max_f32 v187, v187, v167")
        I("v_mov_b32 v188, v187"); I("v_permlane32_swap_b32 v187, v188"); I("v_max_f32 v187, v187, v188")
        I("v_mov_b32 v188, v187"); I("v_permlane16_swap_b32 v187, v188"); I("v_max_f32 v187, v187, v188")
        I("v_mul_f32 v187, s65, v187"); I("v_max_f32 v187, v187, v184")
        I("v_sub_f32 v186, v184, v187"); I("v_mov_b32 v184, v187"); I("v_exp_f32 v186, v186")
        for i in range(8): I(f"v_fma_f32 v{160+i}, v{160+i}, s65, -v187")
        for i in range(8): I(f"v_exp_f32 v{160+i}, v{160+i}")
        for u in range(4): I(f"v_cvt_pk_bf16_f32 v{168+u}, v{160+2*u}, v{161+2*u}")
        I("v_add_f32 v160, v160, v161"); I("v_add_f32 v162, v162, v163"); I("v_add_f32 v164, v164, v165"); I("v_add_f32 v166, v166, v167")
        I("v_add_f32 v160, v160, v162"); I("v_add_f32 v164, v164, v166"); I("v_add_f32 v160, v160, v164")
        I("v_fma_f32 v185, v185, v186, v160")
        for r in range(32, 64): I(f"v_mul_f32 v{r}, v186, v{r}")
        I(f"s_waitcnt vmcnt({16 if e == 0 else 8})")
        def perms(t):
            ts = 172 + 4*(t % 3); w = t // 2; sel = "s66" if t % 2 == 0 else "s67"
            for u in range(4):
                I(f"v_perm_b32 v{ts+u}, v{Vc + (2*u+1)*4 + w}, v{Vc + (2*u)*4 + w}, {sel}")
        perms(0)
        for t in range(8):
            if t + 1 < 8: perms(t + 1)
            ts = 172 + 4*(t % 3)
            I(f"v_mfma_f32_16x16x32_bf16 v[{32+4*t}:{35+4*t}], v[{ts}:{ts+3}], v[168:171], v[{32+4*t}:{35+4*t}]")
    I("s_cmp_eq_u32 s59, 0"); I("s_cbranch_scc1 L_save")
    I("s_cmp_eq_u32 s59, 8"); I("s_cbranch_scc1 L_save")
    I("s_add_u32 s59, s59, 1"); I("s_branch L_loop")
    I("L_save:")
    I("v_mov_b32 v188, v185"); I("v_permlane32_swap_b32 v185, v188"); I("v_add_f32 v185, v185, v188")
    I("v_mov_b32 v188, v185"); I("v_permlane16_swap_b32 v185, v188"); I("v_add_f32 v185, v185, v188")
    I("s_mov_b64 exec, s[70:71]")
    for t in range(8): I(f"ds_write_b128 v189, v[{32+4*t}:{35+4*t}] offset:{t*16}")
    I("ds_write_b64 v191, v[184:185] offset:512")
    I("s_mov_b64 exec, -1")
    I("s_cmp_eq_u32 s59, 8"); I("s_cbranch_scc1 L_tail")
    I("s_waitcnt lgkmcnt(0)")
    for j in range(4):
        I(f"ds_read_b128 a[{64+4*j}:{67+4*j}], v190 offset:{LDS_QL + j*64}")
    for r in range(32, 64): I(f"v_mov_b32 v{r}, 0")
    I("v_mov_b32 v184, 0xff800000"); I("v_mov_b32 v185, 0")
    I(f"v_subrev_u32 v189, 8448, v189"); I(f"v_subrev_u32 v191, 8448, v191")
    I("s_mov_b32 s59, 1")
    I("s_waitcnt lgkmcnt(0)")
    I("s_branch L_loop")
    I("L_tail:")
    stamp()
    I("v_lshrrev_b32 v4, 7, v0"); I("v_bfe_u32 v5, v0, 5, 2"); I("v_and_b32 v6, 31, v0")
    I("v_mul_u32_u24 v7, 8448, v4"); I("v_mul_u32_u24 v8, 528, v5"); I("v_add_u32 v7, v7, v8")
    I(f"v_add_u32 v7, {LDS_ST}, v7"); I("v_lshl_add_u32 v8, v6, 4, v7")
    I("v_lshrrev_b32 v9, 3, v6"); I("v_lshl_add_u32 v9, v5, 2, v9"); I("v_lshlrev_b32 v9, 4, v9"); I("v_lshl_add_u32 v9, v4, 3, v9")
    I("v_and_b32 v10, 7, v6")
    I("v_lshlrev_b32 v11, 12, v9"); I("v_lshl_add_u32 v11, v10, 4, v11")
    I("v_lshlrev_b32 v9, 8, v9")
    I("s_lshl_b32 s68, s56, 4"); I("s_add_u32 s68, s68, s58")
    I("s_lshl_b32 s62, s57, 12"); I("s_lshl_b32 s69, s68, 7"); I("s_add_u32 s62, s62, s69"); I(f"s_add_u32 s62, s62, {BOXO}")
    I("s_lshl_b32 s72, s57, 8"); I("s_lshl_b32 s69, s68, 3"); I("s_add_u32 s72, s72, s69"); I(f"s_add_u32 s72, s72, {BOXML}")
    I("s_waitcnt lgkmcnt(0)"); I("s_barrier")
    for w in range(4):
        I(f"ds_read_b64 v[{12+2*w}:{13+2*w}], v7 offset:{w*2112 + 512}")
    for w in range(4):
        I(f"ds_read_b128 v[{64+4*w}:{67+4*w}], v8 offset:{w*2112}")
    I("s_waitcnt lgkmcnt(4)")
    I("v_max3_f32 v20, v12, v14, v16"); I("v_max_f32 v20, v20, v18")
    for w in range(4): I(f"v_sub_f32 v{12+2*w}, v{12+2*w}, v20")
    for w in range(4): I(f"v_exp_f32 v{12+2*w}, v{12+2*w}")
    I("v_mul_f32 v21, v12, v13"); I("v_fmac_f32 v21, v14, v15"); I("v_fmac_f32 v21, v16, v17"); I("v_fmac_f32 v21, v18, v19")
    I("s_waitcnt lgkmcnt(0)")
    for k in range(4): I(f"v_mul_f32 v{24+k}, v12, v{64+k}")
    for w in range(1, 4):
        for k in range(4): I(f"v_fmac_f32 v{24+k}, v{12+2*w}, v{64+4*w+k}")
    I("buffer_store_dwordx4 v[24:27], v11, s[40:43], s62 offen sc1")
    I("v_cmp_eq_u32 vcc, 0, v10"); I("s_and_saveexec_b64 s[78:79], vcc")
    I("buffer_store_dwordx2 v[20:21], v9, s[40:43], s72 offen sc1")
    I("s_mov_b64 exec, -1")
    stamp()
    I("v_lshlrev_b32 v4, 4, v0")
    I("s_lshl_b32 s62, s2, 12"); I(f"s_add_u32 s62, s62, {BOXO}")
    I("s_lshl_b32 s72, s2, 8"); I(f"s_add_u32 s72, s72, {BOXML}")
    I("v_lshrrev_b32 v5, 3, v0"); I("v_lshlrev_b32 v5, 3, v5")
    I("v_and_b32 v6, 15, v1"); I("s_lshr_b32 s68, s3, 1"); I("s_lshl_b32 s68, s68, 7"); I("v_lshl_add_u32 v6, v6, 3, s68")
    I(f"s_mov_b32 s74, {spin}")
    I("L_p1:")
    I("buffer_load_dwordx4 v[8:11], v4, s[40:43], s62 offen sc1")
    I("buffer_load_dwordx2 v[12:13], v5, s[40:43], s72 offen sc1")
    I("buffer_load_dwordx2 v[14:15], v6, s[40:43], s72 offen sc1")
    I("s_waitcnt vmcnt(0)")
    I("v_max3_u32 v16, v8, v9, v10"); I("v_max3_u32 v16, v16, v11, v12"); I("v_max3_u32 v16, v16, v13, v14"); I("v_max_u32 v16, v16, v15")
    I("v_cmp_eq_u32 vcc, -1, v16")
    I("s_cbranch_vccz L_p1ok")
    I("s_sub_u32 s74, s74, 1"); I("s_cbranch_scc0 L_p1")
    I("L_p1ok:")
    stamp()
    I("v_mov_b32 v16, v14")
    for n in (8, 4, 2, 1): I(f"v_max_f32_dpp v16, v16, v16 row_ror:{n} row_mask:0xf bank_mask:0xf")
    I("v_sub_f32 v14, v14, v16"); I("v_sub_f32 v12, v12, v16"); I("v_exp_f32 v14, v14"); I("v_exp_f32 v12, v12")
    I("v_mul_f32 v17, v14, v15")
    for k in range(4): I(f"v_mul_f32 v{8+k}, v12, v{8+k}")
    for n in (8, 4, 2, 1): I(f"v_add_f32_dpp v17, v17, v17 row_ror:{n} row_mask:0xf bank_mask:0xf")
    for k in range(4): I(f"v_add_f32_dpp v{8+k}, v{8+k}, v{8+k} row_ror:8 row_mask:0xf bank_mask:0xf")
    for k in range(4): I(f"v_mov_b32 v{20+k}, v{8+k}")
    for k in range(4): I(f"v_permlane16_swap_b32 v{8+k}, v{20+k}")
    for k in range(4): I(f"v_add_f32 v{8+k}, v{8+k}, v{20+k}")
    for k in range(4): I(f"v_mov_b32 v{20+k}, v{8+k}")
    for k in range(4): I(f"v_permlane32_swap_b32 v{8+k}, v{20+k}")
    for k in range(4): I(f"v_add_f32 v{8+k}, v{8+k}, v{20+k}")
    I(f"s_mul_i32 s68, s3, 144"); I(f"s_add_u32 s68, s68, {LDS_RED}")
    I("v_lshl_add_u32 v4, v1, 4, s68"); I("v_mov_b32 v5, s68")
    I("s_mov_b64 exec, 0xff"); I("ds_write_b128 v4, v[8:11]")
    I("s_mov_b64 exec, 1"); I("ds_write_b32 v5, v17 offset:128")
    I("s_mov_b64 exec, -1")
    I("v_and_b32 v5, 1, v1"); I("v_mul_u32_u24 v5, 288, v5"); I("v_lshrrev_b32 v6, 4, v1"); I("v_lshl_add_u32 v7, v6, 5, v5")
    I("s_waitcnt lgkmcnt(0)"); I("s_barrier")
    I(f"ds_read_b128 v[8:11], v7 offset:{LDS_RED}"); I(f"ds_read_b128 v[12:15], v7 offset:{LDS_RED + 16}")
    I(f"ds_read_b128 v[16:19], v7 offset:{LDS_RED + 144}"); I(f"ds_read_b128 v[20:23], v7 offset:{LDS_RED + 160}")
    I(f"ds_read_b32 v24, v5 offset:{LDS_RED + 128}")
    def wperms(t, ts):
        w = t // 2; sel = "s66" if t % 2 == 0 else "s67"
        for u in range(4):
            I(f"v_perm_b32 v{ts+u}, v{128 + (2*u+1)*4 + w}, v{128 + (2*u)*4 + w}, {sel}")
    for t in range(8): wperms(t, 64 + 4*t)
    I("s_waitcnt lgkmcnt(0)")
    I("v_rcp_f32 v24, v24")
    for k in range(8): I(f"v_add_f32 v{8+k}, v{8+k}, v{16+k}")
    for k in range(8): I(f"v_mul_f32 v{8+k}, v24, v{8+k}")
    for u in range(4): I(f"v_cvt_pk_bf16_f32 v{168+u}, v{8+2*u}, v{9+2*u}")
    for t in range(8):
        I(f"v_mfma_f32_16x16x32_bf16 v[{32+4*t}:{35+4*t}], v[{64+4*t}:{67+4*t}], v[168:171], 0")
    I("v_and_b32 v5, 1, v1"); I("v_lshlrev_b32 v5, 18, v5"); I("v_lshl_add_u32 v5, v6, 14, v5")
    I("s_lshl_b32 s62, s56, 7"); I("s_lshl_b32 s68, s3, 4"); I("s_add_u32 s62, s62, s68"); I("s_lshl_b32 s62, s62, 12")
    I("s_lshl_b32 s68, s57, 4"); I("s_add_u32 s68, s68, s58"); I("s_lshl_b32 s68, s68, 5"); I("s_add_u32 s62, s62, s68"); I(f"s_add_u32 s62, s62, {BOX2}")
    I("s_mov_b32 s68, 0x00030003"); I("s_mov_b32 s69, 0x00030003"); I("s_mov_b64 exec, s[68:69]")
    for t in range(8):
        if t and t % 2 == 0: I("s_add_u32 s62, s62, 0x1000")
        I(f"buffer_store_dwordx4 v[{32+4*t}:{35+4*t}], v5, s[40:43], s62 offen offset:{(t%2)*16} sc1")
    I("s_mov_b64 exec, -1")
    stamp()
    I("s_cmp_eq_u32 s3, 0"); I("s_cbranch_scc0 L_fin")
    I("v_lshlrev_b32 v4, 4, v1")
    I("s_lshl_b32 s62, s2, 12"); I(f"s_add_u32 s62, s62, {BOX2}")
    I(f"s_mov_b32 s74, {spin}")
    I("L_p2:")
    for i in range(4): I(f"buffer_load_dwordx4 v[{8+4*i}:{11+4*i}], v4, s[40:43], s62 offen offset:{i*1024} sc1")
    I("s_waitcnt vmcnt(0)")
    I("v_max3_u32 v24, v8, v9, v10")
    for k in range(11, 23, 2): I(f"v_max3_u32 v24, v24, v{k}, v{k+1}")
    I("v_max_u32 v24, v24, v23")
    I("v_cmp_eq_u32 vcc, -1, v24")
    I("s_cbranch_vccz L_p2ok")
    I("s_sub_u32 s74, s74, 1"); I("s_cbranch_scc0 L_p2")
    I("L_p2ok:")
    stamp()
    for k in range(4): I(f"v_add_f32 v{8+k}, v{8+k}, v{12+k}")
    for k in range(4): I(f"v_add_f32 v{16+k}, v{16+k}, v{20+k}")
    for k in range(4): I(f"v_add_f32 v{8+k}, v{8+k}, v{16+k}")
    for k in range(4): I(f"v_add_f32_dpp v{8+k}, v{8+k}, v{8+k} quad_perm:[2,3,0,1] row_mask:0xf bank_mask:0xf")
    for k in range(4): I(f"v_add_f32_dpp v{8+k}, v{8+k}, v{8+k} row_ror:4 row_mask:0xf bank_mask:0xf")
    for k in range(4): I(f"v_add_f32_dpp v{8+k}, v{8+k}, v{8+k} row_ror:8 row_mask:0xf bank_mask:0xf")
    for k in range(4): I(f"v_mov_b32 v{20+k}, v{8+k}")
    for k in range(4): I(f"v_permlane16_swap_b32 v{8+k}, v{20+k}")
    for k in range(4): I(f"v_add_f32 v{8+k}, v{8+k}, v{20+k}")
    for k in range(4): I(f"v_mov_b32 v{20+k}, v{8+k}")
    for k in range(4): I(f"v_permlane32_swap_b32 v{8+k}, v{20+k}")
    for k in range(4): I(f"v_add_f32 v{8+k}, v{8+k}, v{20+k}")
    for k in range(4): I(f"v_mov_b32_dpp v{20+k}, v{8+k} quad_perm:[1,0,3,2] row_mask:0xf bank_mask:0xf")
    for k in range(4): I(f"v_cvt_pk_bf16_f32 v{8+k}, v{8+k}, v{20+k}")
    I("s_mov_b32 s48, s24"); I("s_mov_b32 s49, s25"); I("s_mov_b32 s50, 0x1000")
    I("s_bfe_u32 s62, s2, 0x10006"); I("s_lshl_b32 s62, s62, 11")
    I("s_lshr_b32 s68, s2, 7"); I("s_lshl_b32 s68, s68, 10"); I("s_add_u32 s62, s62, s68")
    I("s_bfe_u32 s68, s2, 0x20004"); I("s_lshl_b32 s68, s68, 8"); I("s_add_u32 s62, s62, s68")
    I("s_bfe_u32 s68, s2, 0x20002"); I("s_lshl_b32 s68, s68, 6"); I("s_add_u32 s62, s62, s68")
    I("s_and_b32 s68, s2, 3"); I("s_lshl_b32 s68, s68, 2"); I("s_add_u32 s62, s62, s68")
    I("s_mov_b64 exec, 1")
    for r in range(4): I(f"buffer_store_dword v{8+r}, off, s[48:51], s62 offset:{r*16}")
    I("s_cmp_eq_u32 s2, 0"); I("s_cbranch_scc0 L_noep")
    I("v_mov_b32 v12, s64")
    I("buffer_store_dword v12, off, s[40:43], 0 sc1")
    I("L_noep:")
    I("s_mov_b64 exec, -1")
    I("L_fin:")
    if stamps:
        stamp()
        n = nst[0]
        I("s_getreg_b32 s79, hwreg(HW_REG_XCC_ID)")
        I("s_lshl_b32 s62, s2, 2"); I("s_add_u32 s62, s62, s3"); I("s_lshl_b32 s62, s62, 6"); I(f"s_add_u32 s62, s62, {STAMP}")
        I("s_mov_b64 exec, 1")
        for k in range(n):
            I(f"v_mov_b32 v4, s{80+k}"); I(f"buffer_store_dword v4, off, s[40:43], s62 offset:{4*k}")
        I("v_mov_b32 v4, s79"); I(f"buffer_store_dword v4, off, s[40:43], s62 offset:60")
    I("L_end:"); I("s_endpgm")
    I('.section .rodata,"a"'); I(".p2align 6"); I(f".amdhsa_kernel {KN}")
    I("  .amdhsa_next_free_vgpr 272"); I("  .amdhsa_next_free_sgpr 102"); I("  .amdhsa_accum_offset 192")
    I("  .amdhsa_group_segment_fixed_size 0"); I("  .amdhsa_kernarg_size 104"); I("  .amdhsa_user_sgpr_count 2")
    I("  .amdhsa_user_sgpr_kernarg_segment_ptr 1"); I("  .amdhsa_system_sgpr_workgroup_id_x 1"); I(".end_amdhsa_kernel")
    L2 = fix_hazards(L)
    return "\n".join(L2) + "\n"

if __name__ == "__main__":
    import argparse
    ap = argparse.ArgumentParser()
    ap.add_argument("-o", default="/dev/stdout"); ap.add_argument("--D", type=int, default=8)
    ap.add_argument("--stamps", action="store_true"); ap.add_argument("--wqfl", default="nt"); ap.add_argument("--wofl", default="nt")
    a = ap.parse_args()
    open(a.o, "w").write(gen(D=a.D, stamps=a.stamps, wqfl=a.wqfl, wofl=a.wofl))
```
